```python
import torch

def _softmax(x, axis=-1):
    return torch.softmax(x, dim=axis)
def _gelu(x):
    return torch.nn.functional.gelu(x, approximate="tanh")
def _silu(x):
    return torch.nn.functional.silu(x)
def _sigmoid(x):
    return torch.sigmoid(x)
def _layernorm(x, axis=-1, eps=1e-5):
    m = x.mean(dim=axis, keepdim=True)
    v = x.var(dim=axis, keepdim=True, unbiased=False)
    return (x - m) / torch.sqrt(v + eps)
def _scatter_add(tgt, idx, src, axis=0):
    return tgt.clone().index_add_(axis, idx, src)
def _segment_sum(src, seg, n):
    out = torch.zeros((n,) + src.shape[1:], dtype=src.dtype)
    return out.index_add_(0, seg, src)
def _pad(x, pw):
    flat = tuple(v for pair in reversed(pw) for v in pair)
    return torch.nn.functional.pad(x, flat)

kernel_name = 'concat_heads__mha_block_cached__gqa_block_cached__near_ridge'

def setup_inputs():

    _w = (lambda a: (lambda t: t.to(torch.bfloat16) if t.is_floating_point() else t)(torch.as_tensor(a)))
    def _A_setup():
        B, Sq, D = 8, 224, 640
        H, Sk, Dh = 32, 512, 128
        return {
            "x": _w((lambda *s: torch.randn(*s, dtype=torch.bfloat16) * 0.8)(B, Sq, D)),
            "k_cache": _w((lambda *s: torch.randn(*s, dtype=torch.bfloat16) * 0.8)(B, H, Sk, Dh)),
            "v_cache": _w((lambda *s: torch.randn(*s, dtype=torch.bfloat16) * 0.05)(B, H, Sk, Dh)),
            "wq": _w((lambda *s: torch.randn(*s, dtype=torch.bfloat16) * 0.8)(D, H * Dh) * (D ** -0.5)),
            "wo": _w((lambda *s: torch.randn(*s, dtype=torch.bfloat16) * 0.05)(H * Dh, D) * ((H * Dh) ** -0.5)),
        }
    _A_in = _A_setup()

    def _B_setup():
        B, Sq, D = 8, 224, 640
        Hq, Hkv, Sk, Dh = 32, 32, 512, 128
        assert Hq % Hkv == 0, (Hq, Hkv)
        return {
            "x": _w((lambda *s: torch.randn(*s, dtype=torch.bfloat16) * 0.8)(B, Sq, D)),
            "k_cache": _w((lambda *s: torch.randn(*s, dtype=torch.bfloat16) * 0.8)(B, Hkv, Sk, Dh)),
            "v_cache": _w((lambda *s: torch.randn(*s, dtype=torch.bfloat16) * 0.05)(B, Hkv, Sk, Dh)),
            "wq": _w((lambda *s: torch.randn(*s, dtype=torch.bfloat16) * 0.8)(D, Hq * Dh) * (D ** -0.5)),
            "wo": _w((lambda *s: torch.randn(*s, dtype=torch.bfloat16) * 0.05)(Hq * Dh, D) * ((Hq * Dh) ** -0.5)),
        }
    _B_in = _B_setup()

    return {
        "A_x": _A_in["x"],
        "A_k_cache": _A_in["k_cache"],
        "A_v_cache": _A_in["v_cache"],
        "A_wq": _A_in["wq"],
        "A_wo": _A_in["wo"],
        "B_x": _B_in["x"],
        "B_k_cache": _B_in["k_cache"],
        "B_v_cache": _B_in["v_cache"],
        "B_wq": _B_in["wq"],
        "B_wo": _B_in["wo"],
    }

def reference(A_x, A_k_cache, A_v_cache, A_wq, A_wo, B_x, B_k_cache, B_v_cache, B_wq, B_wo):
    def _A_ref(x, k_cache, v_cache, wq, wo):
        B, Sq, D = x.shape
        H, Dh = 32, 128
        q = (lambda x, *d: x.permute(*d))((x @ wq).reshape(B, Sq, H, Dh), 0, 2, 1, 3)
        scores = torch.einsum("bhqd,bhkd->bhqk", q, k_cache) * (Dh ** -0.5)
        p = _softmax(scores, axis=-1)
        o = torch.einsum("bhqk,bhkd->bhqd", p, v_cache)
        return (lambda x, *d: x.permute(*d))(o, 0, 2, 1, 3).reshape(B, Sq, H * Dh) @ wo

    def _B_ref(x, k_cache, v_cache, wq, wo):
        B, Sq, D = x.shape
        Hq, Dh = 32, 128
        Hkv = k_cache.shape[1]
        rep = Hq // Hkv
        q = (lambda x, *d: x.permute(*d))((x @ wq).reshape(B, Sq, Hq, Dh), 0, 2, 1, 3)
        k = (lambda x, n, axis: torch.repeat_interleave(x, n, dim=axis))(k_cache, rep, axis=1)
        v = (lambda x, n, axis: torch.repeat_interleave(x, n, dim=axis))(v_cache, rep, axis=1)
        scores = torch.einsum("bhqd,bhkd->bhqk", q, k) * (Dh ** -0.5)
        p = _softmax(scores, axis=-1)
        o = torch.einsum("bhqk,bhkd->bhqd", p, v)
        return (lambda x, *d: x.permute(*d))(o, 0, 2, 1, 3).reshape(B, Sq, Hq * Dh) @ wo

    a = _A_ref(A_x, A_k_cache, A_v_cache, A_wq, A_wo)
    b = _B_ref(B_x, B_k_cache, B_v_cache, B_wq, B_wo)
    return torch.concatenate([a, b], axis=-1)
```

```python
import sys
HDR = """; @launch grid=(256,1,1) block=(256,1,1) lds=%d
.amdgcn_target "amdgcn-amd-amdhsa--gfx950"
.text
.globl mb_kernel
.p2align 8
.type mb_kernel,@function
mb_kernel:
"""
FTR = """
s_endpgm
.section .rodata,"a"
.p2align 6
.amdhsa_kernel mb_kernel
  .amdhsa_next_free_vgpr %d
  .amdhsa_next_free_sgpr 96
  .amdhsa_accum_offset %d
  .amdhsa_group_segment_fixed_size 0
  .amdhsa_kernarg_size 16
  .amdhsa_user_sgpr_count 2
  .amdhsa_user_sgpr_kernarg_segment_ptr 1
  .amdhsa_system_sgpr_workgroup_id_x 1
.end_amdhsa_kernel
"""
def prologue(in_bytes):
    L = []
    a = L.append
    a("s_load_dwordx2 s[4:5], s[0:1], 0")
    a("s_load_dwordx2 s[6:7], s[0:1], 8")
    a("s_waitcnt lgkmcnt(0)")
    a("s_mov_b32 s8, s4"); a("s_mov_b32 s9, s5"); a("s_mov_b32 s10, 0x%x" % in_bytes); a("s_mov_b32 s11, 0x20000")
    a("s_mov_b32 s12, s6"); a("s_mov_b32 s13, s7"); a("s_mov_b32 s14, 0x100000"); a("s_mov_b32 s15, 0x20000")
    a("v_lshrrev_b32 v1, 6, v0")
    a("s_nop 1")
    a("v_readfirstlane_b32 s16, v1")
    a("v_and_b32 v2, 63, v0")
    a("v_lshlrev_b32 v3, 4, v0")
    return L
def epilogue():
    L = []
    a = L.append
    a("s_sub_u32 s28, s24, s20")
    a("s_sub_u32 s29, s26, s22")
    a("s_lshl_b32 s30, s2, 2")
    a("s_add_u32 s30, s30, s16")
    a("s_lshl_b32 s30, s30, 3")
    a("v_mov_b32 v4, s28"); a("v_mov_b32 v5, s29"); a("v_mov_b32 v6, s30")
    a("v_cmp_eq_u32 vcc, 0, v2")
    a("s_and_saveexec_b64 s[32:33], vcc")
    a("buffer_store_dwordx2 v[4:5], v6, s[12:15], 0 offen")
    a("s_waitcnt vmcnt(0)")
    return L

def make(body, iters, lds=65536, nv=512, acc=256, in_bytes=64<<20, pre=None):
    L = prologue(in_bytes)
    a = L.append
    for r in range(16, 256, 4):
        a("buffer_load_dwordx4 v[%d:%d], v3, s[8:11], 0 offen offset:%d" % (r, r+3, (r*16) % 4096))
        if r % 64 == 60: a("s_waitcnt vmcnt(0)")
    a("s_waitcnt vmcnt(0)")
    if nv > 256:
        for r in range(0, nv-acc):
            a("v_accvgpr_write_b32 a%d, 0" % r)
    a("v_lshlrev_b32 v7, 4, v0")
    for i in range(lds // 4096):
        a("ds_write_b128 v7, v[%d:%d] offset:%d" % (16 + 4*(i % 50), 19 + 4*(i % 50), i*4096))
    a("s_waitcnt lgkmcnt(0)")
    a("s_barrier")
    for r in range(200, 232):
        a("v_cvt_f32_u32 v%d, v2" % r)
        a("v_mul_f32 v%d, 0x3c000000, v%d" % (r, r))
    a("v_lshlrev_b32 v8, 4, v2")
    a("v_lshlrev_b32 v9, 3, v2")
    a("s_lshl_b32 s40, s2, 16")
    a("s_lshl_b32 s41, s16, 13")
    a("s_add_u32 s40, s40, s41")
    a("s_lshl_b32 s42, s16, 13")
    a("s_add_u32 s42, s42, 32768")
    if pre: L += pre
    a("s_mov_b32 s17, %d" % iters)
    a("s_barrier")
    a("s_memtime s[20:21]"); a("s_memrealtime s[22:23]")
    a("s_waitcnt lgkmcnt(0)")
    a(".p2align 6")
    a("Lloop:")
    L += body
    a("s_sub_u32 s17, s17, 1")
    a("s_cmp_lg_u32 s17, 0")
    a("s_cbranch_scc1 Lloop")
    a("s_waitcnt vmcnt(0) lgkmcnt(0)")
    a("s_memtime s[24:25]"); a("s_memrealtime s[26:27]")
    a("s_waitcnt lgkmcnt(0)")
    L += epilogue()
    return HDR % lds + "\n".join(L) + FTR % (nv, acc)

def mf32(i, nacc=16):
    d = 16 * (i % nacc)
    A = 16 + 4 * (i % 8); B = 64 + 4 * ((i // 4) % 8)
    return "v_mfma_f32_32x32x16_bf16 a[%d:%d], v[%d:%d], v[%d:%d], a[%d:%d]" % (d, d+15, A, A+3, B, B+3, d, d+15)
def mf16(i, nacc=32):
    d = 4 * (i % nacc)
    A = 16 + 4 * (i % 8); B = 64 + 4 * ((i // 4) % 8)
    return "v_mfma_f32_16x16x32_bf16 a[%d:%d], v[%d:%d], v[%d:%d], a[%d:%d]" % (d, d+3, A, A+3, B, B+3, d, d+3)

class F:
    def __init__(self): self.c = {}
    def nxt(self, k):
        self.c[k] = self.c.get(k, -1) + 1
        return self.c[k]
    def get(self, k):
        i = self.nxt(k)
        if k == 'e': return ["v_exp_f32 v%d, v%d" % (100 + i % 16, 200 + i % 16)]
        if k == 'a': return ["v_add_f32 v%d, v%d, v%d" % (120 + i % 4, 120 + i % 4, 216 + i % 16)]
        if k == 'c': return ["v_cvt_pk_bf16_f32 v%d, v%d, v%d" % (130 + i % 8, 200 + (2*i) % 16, 201 + (2*i) % 16)]
        if k == 'm': return ["v_max3_f32 v%d, v%d, v%d, v%d" % (140 + i % 2, 140 + i % 2, 216 + (2*i) % 16, 217 + (2*i) % 16)]
        if k == 'f': return ["v_fma_f32 v%d, v%d, v%d, v%d" % (144 + i % 16, 216 + i % 16, 232, 233)]
        if k == 'p': return ["v_pk_add_f32 v[%d:%d], v[%d:%d], v[%d:%d]" % (120 + 2*(i % 2), 121 + 2*(i % 2), 120 + 2*(i % 2), 121 + 2*(i % 2), 216 + (2*i) % 16, 217 + (2*i) % 16)]
        if k == 'd': return ["v_dot2_f32_bf16 v%d, v%d, v%d, v%d" % (120 + i % 4, 130 + i % 8, 234, 120 + i % 4)]
        if k == 'R': return ["ds_read_b128 v[%d:%d], v8 offset:%d" % (160 + 4*(i % 8), 163 + 4*(i % 8), 1024 * (i % 32))]
        if k == 'T': return ["ds_read_b64_tr_b16 v[%d:%d], v9 offset:%d" % (192 + 2*(i % 4), 193 + 2*(i % 4), 512 * (i % 64))]
        if k == 'D': return ["s_add_u32 m0, s42, %d" % (1024 * (i % 8)), "buffer_load_dwordx4 v8, s[8:11], s40 offen offset:%d lds" % (0)]
        if k == 'G': return ["buffer_load_dwordx4 v[%d:%d], v8, s[8:11], s40 offen offset:%d" % (236 + 4*(i % 4), 239 + 4*(i % 4), 1024*(i % 4))]
        if k == 'W': return ["s_waitcnt vmcnt(8)"]
        if k == 'L': return ["s_waitcnt lgkmcnt(4)"]
        if k == 's': return ["s_add_u32 s50, s50, 1"]
        if k == 'n': return ["s_nop 0"]
        if k == 'S':
            return ["v_mfma_f32_16x16x32_bf16 v[%d:%d], v[16:19], v[%d:%d], v[%d:%d]" % (240+4*(i%2), 243+4*(i%2), 64+4*(i%8), 67+4*(i%8), 240+4*(i%2), 243+4*(i%2))]
        raise
def body(pattern, n, mf=mf32):
    f = F(); L = []
    for i in range(n):
        L.append(mf(i))
        for ch in pattern[i % len(pattern)]:
            L += f.get(ch)
    return L

V = {
 'bare32': (['' ], 56, mf32),
 'bare16': (['' ], 112, mf16),
 'e':      (['e'], 56, mf32),
 'ea':     (['ea'], 56, mf32),
 'eac':    (['eac', 'ea'], 56, mf32),
 'eacm':   (['eac', 'eam'], 56, mf32),
 'feacm':  (['feac', 'feam'], 56, mf32),
 'epc':    (['epc', 'e'], 56, mf32),
 'edc':    (['edc', 'e'], 56, mf32),
 'eacR':   (['eacR', 'ea', 'eacT', 'eaT', 'eac', 'ea', 'eacL'], 56, mf32),
 'eacRD':  (['eacR', 'ea', 'eacT', 'eaT', 'eac', 'eaD', 'eacLW'], 56, mf32),
 'eacRD2': (['eacR', 'ea', 'eacT', 'eaT', 'eac', 'eaL', 'eacD'], 56, mf32),
 'D':      (['D', '', '', '', '', '', 'W'], 56, mf32),
 'G':      (['G', '', '', '', '', '', 'W'], 56, mf32),
 'eacmRD': (['eacR', 'eam', 'eacT', 'eamT', 'eac', 'eamD', 'eacLW', 'eamR', 'eac', 'eamT', 'eacT', 'eam', 'eacD', 'eamLW'], 56, mf32),
 'feacmRD': (['feacR', 'feam', 'feacT', 'feamT', 'feac', 'feamD', 'feacLW', 'feamR', 'feac', 'feamT', 'feacT', 'feam', 'feacD', 'feamLW'], 56, mf32),
 'ecS':    (['ec', 'e', 'ec', 'e', 'ec', 'e', 'ec', 'eS'], 56, mf32),
 '16eac':  (['e', 'ac', 'e', 'a'], 112, mf16),
 '16ec':   (['e', 'c', 'e', ''], 112, mf16),
 '16R':    (['R', '', 'T', '', 'T', '', '', '', '', '', 'L', '', '', ''], 112, mf16),
 'gemm32': (['R', 'T', 'T', 'R', 'TT', 'D', 'R', 'T', 'T', 'R', 'T', 'T', 'D', 'LW'], 56, mf32),
 'aaaaa':  (['aaaaa'], 56, mf32),
 'aaaaaa':  (['aaaaaa'], 56, mf32),
 'aaaaaaa':  (['aaaaaaa'], 56, mf32),
 'ee':  (['ee'], 56, mf32),
 'eee':  (['eee'], 56, mf32),
 'eeaa':  (['eeaa'], 56, mf32),
 'eeaac':  (['eeaac'], 56, mf32),
}
if __name__ == "__main__":
    import os
    for name, (pat, n, mf) in V.items():
        open("mb1_%s.s" % name, "w").write(make(body(pat, n, mf), 40))
    print(" ".join(V.keys()))
```

```python
import gen1
from gen1 import *
def make2(body, inner, outer, lds=65536, nv=512, acc=256, zero=False):
    L = prologue(64<<20)
    a = L.append
    for r in range(16, 256, 4):
        a("buffer_load_dwordx4 v[%d:%d], v3, s[8:11], 0 offen offset:%d" % (r, r+3, (r*16) % 4096))
        if r % 64 == 60: a("s_waitcnt vmcnt(0)")
    a("s_waitcnt vmcnt(0)")
    if zero:
        for r in range(16, 256): a("v_mov_b32 v%d, 0" % r)
    for r in range(0, nv-acc):
        a("v_accvgpr_write_b32 a%d, 0" % r)
    a("v_lshlrev_b32 v7, 4, v0")
    for i in range(lds // 4096):
        a("ds_write_b128 v7, v[%d:%d] offset:%d" % (16 + 4*(i % 50), 19 + 4*(i % 50), i*4096))
    a("s_waitcnt lgkmcnt(0)")
    a("s_barrier")
    for r in range(200, 232):
        a("v_cvt_f32_u32 v%d, v2" % r)
        a("v_mul_f32 v%d, 0x3c000000, v%d" % (r, r))
    a("v_lshlrev_b32 v8, 4, v2")
    a("v_lshlrev_b32 v9, 3, v2")
    a("s_lshl_b32 s40, s2, 16"); a("s_lshl_b32 s41, s16, 13"); a("s_add_u32 s40, s40, s41")
    a("s_lshl_b32 s42, s16, 13"); a("s_add_u32 s42, s42, 32768")
    a("s_lshl_b32 s30, s2, 2"); a("s_add_u32 s30, s30, s16"); a("s_mul_i32 s30, s30, %d" % (outer*8))
    a("s_mov_b32 s18, %d" % outer)
    a("s_barrier")
    a("Louter:")
    a("s_memtime s[20:21]"); a("s_memrealtime s[22:23]")
    a("s_waitcnt lgkmcnt(0)")
    a("v_mov_b32 v4, s20"); a("v_mov_b32 v5, s22"); a("v_mov_b32 v6, s30")
    a("v_cmp_eq_u32 vcc, 0, v2")
    a("s_and_saveexec_b64 s[32:33], vcc")
    a("buffer_store_dwordx2 v[4:5], v6, s[12:15], 0 offen")
    a("s_mov_b64 exec, s[32:33]")
    a("s_add_u32 s30, s30, 8")
    a("s_mov_b32 s17, %d" % inner)
    a(".p2align 6")
    a("Lloop:")
    L += body
    a("s_sub_u32 s17, s17, 1"); a("s_cmp_lg_u32 s17, 0"); a("s_cbranch_scc1 Lloop")
    a("s_sub_u32 s18, s18, 1"); a("s_cmp_lg_u32 s18, 0"); a("s_cbranch_scc1 Louter")
    a("s_waitcnt vmcnt(0) lgkmcnt(0)")
    return HDR % lds + "\n".join(L) + FTR % (nv, acc)

def mfx(shape, aidx, bidx, didx, vacc=False):
    def f(i):
        A = 16 + 4 * aidx(i); B = 64 + 4 * bidx(i)
        if shape == 32:
            d = 16 * didx(i); n = 16; op = "v_mfma_f32_32x32x16_bf16"
        else:
            d = 4 * didx(i); n = 4; op = "v_mfma_f32_16x16x32_bf16"
        p = 'a'
        if vacc: p = 'v'; d += 128
        return "%s %s[%d:%d], v[%d:%d], v[%d:%d], %s[%d:%d]" % (op, p, d, d+n-1, A, A+3, B, B+3, p, d, d+n-1)
    return f
V2 = {
 'r32': (make2(body([''], 56, mf32), 3, 40), 56*3),
 'r16': (make2(body([''], 112, mf16), 3, 40), 56*3),
 'z16': (make2(body([''], 112, mf16), 3, 40, zero=True), 56*3),
 'r16_Afix7': (make2(body([''], 112, mfx(16, lambda i: (i//7) % 8, lambda i: i % 7, lambda i: i % 56)), 3, 40), 56*3),
 'r16_Bfix7': (make2(body([''], 112, mfx(16, lambda i: i % 7, lambda i: (i//7) % 8, lambda i: i % 56)), 3, 40), 56*3),
 'r16_allchg': (make2(body([''], 112, mfx(16, lambda i: i % 8, lambda i: (i*3) % 8, lambda i: i % 56)), 3, 40), 56*3),
 'r16_chain4': (make2(body([''], 112, mfx(16, lambda i: i % 4, lambda i: i % 8, lambda i: (i//4) % 28)), 3, 40), 56*3),
 'r16_vacc': (make2(body([''], 112, mfx(16, lambda i: (i//7) % 8, lambda i: i % 7, lambda i: i % 14, vacc=True)), 3, 40), 56*3),
 'r32_Afix': (make2(body([''], 56, mfx(32, lambda i: (i//4) % 8, lambda i: i % 4, lambda i: i % 16)), 3, 40), 56*3),
 'r32_chain': (make2(body([''], 56, mfx(32, lambda i: i % 8, lambda i: i % 8, lambda i: (i//8) % 7)), 3, 40), 56*3),
 'r16_eac': (make2(body(['e','ac','e','a'], 112, mfx(16, lambda i: (i//7) % 8, lambda i: i % 7, lambda i: i % 56)), 3, 40), 56*3),
}
if __name__ == "__main__":
    for k,(s,n) in V2.items():
        open("mb2_%s.s" % k, "w").write(s)
```

```python
import gen1
from gen1 import *
from gen2 import mfx
m16 = mfx(16, lambda i: (i//7) % 8, lambda i: i % 7, lambda i: i % 56)
_old = F.get
def get2(self, k):
    if k == 'X':
        i = self.nxt(k)
        return ["buffer_load_dwordx4 v8, s[8:11], s40 offen offset:%d lds" % (1024*(i % 4))]
    if k == 'B': return ["s_barrier"]
    if k == 'Z': return ["s_waitcnt lgkmcnt(0)"]
    if k == 'r':
        i = self.nxt(k); return ["v_accvgpr_read_b32 v%d, a%d" % (100 + i % 16, 240 + i % 16)]
    if k == 'K':
        i = self.nxt(k); return ["ds_read_b128 a[%d:%d], v8 offset:%d" % (224 + 4*(i % 8), 227 + 4*(i % 8), 1024 * (i % 32))]
    return _old(self, k)
F.get = get2
pre = ["s_mov_b32 m0, s42"]
V = {}
def add(name, pat): V[name] = (pat, 112, m16)
for p in ['se','sa','saa','sse','sac','ne','Wa','We']:
    add(p, [p])
E = ['e']*6
add('e7', ['e']*7)
add('e6_R', E+['R']); add('e6_RR', E+['RR']); add('e6_RRR', E+['RRR']); add('e6_RRRR', E+['RRRR'])
add('e6_T', E+['T']); add('e6_TT', E+['TT']); add('e6_TTTT', E+['TTTT']); add('e6_T8', E+['TTTTTTTT'])
add('e6_K', E+['K']); add('e6_KKKK', E+['KKKK'])
add('e6_X', E+['X']); add('e6_XW', E+['WX']); add('e6_XX', E+['XX']);  add('e6_D', E+['D']); add('e5se_X', ['e']*5+['se','X'])
add('e6_RX', E+['RX']); add('e6_XR', E+['XR']); add('e6_TTX', E+['TTX']); add('e6_XTT', E+['XTT']); add('e6_Xa', E+['Xa']); add('e6_Ra', E+['Ra']); add('e6_Xs', E+['Xs']); add('e6_Rss', E+['Rss'])
add('e6_B', E+['B']); add('e6_ZB', E+['ZB']); add('e13_B', ['e']*13+['B'])
add('e5_X_0', ['e']*5+['X',''])
add('e5_X_a', ['e']*5+['X','a'])
add('e5_X_R', ['e']*5+['X','R'])
add('e5_X_X', ['e']*5+['X','X'])
add('e5_R_R', ['e']*5+['R','R'])
if __name__ == "__main__":
    for name, (pat, n, mf) in V.items():
        open("mb7_%s.s" % name, "w").write(make(body(pat, n, mf), 40, pre=pre))
```

```python
from gen1 import HDR, FTR, prologue, epilogue
def issue(kind, mask, nt='nt'):
    L = prologue(160<<20); a = L.append
    if kind == 'x':   a("v_mul_u32_u24 v10, 0x500, v2"); inc=128; nl=28; wst=28*1280; cst=512*1024
    if kind == 'wq':  a("v_lshrrev_b32 v9, 2, v2"); a("v_and_b32 v10, 3, v2"); a("v_lshlrev_b32 v10, 7, v10"); a("v_lshl_add_u32 v10, v9, 13, v10"); inc=64*8192; nl=16; wst=4*8192; cst=None
    if kind == 'lin': a("v_lshlrev_b32 v10, 7, v2"); inc=8192; nl=28; wst=128*1024; cst=512*1024
    if kind == 's8k': a("v_lshlrev_b32 v10, 13, v2"); inc=128; nl=64; wst=2048; cst=512*1024
    if cst: a("s_mul_i32 s40, s2, %d" % cst)
    else:
        a("s_and_b32 s44, s2, 15"); a("s_lshl_b32 s40, s44, 9"); a("s_lshr_b32 s44, s2, 4"); a("s_and_b32 s45, s44, 3"); a("s_mul_i32 s45, s45, %d" % (16*8192)); a("s_add_u32 s40, s40, s45")
        a("s_lshr_b32 s44, s44, 2"); a("s_lshl_b32 s44, s44, 23"); a("s_add_u32 s40, s40, s44")
    a("s_mul_i32 s41, s16, %d" % wst); a("s_add_u32 s40, s40, s41")
    a("s_lshl_b32 s30, s2, 2"); a("s_add_u32 s30, s30, s16"); a("s_mul_i32 s30, s30, 64")
    if mask == 'oob':
        a("v_mov_b32 v11, 0x7ff00000"); a("v_cmp_gt_u32 vcc, %d, v2" % nl); a("s_nop 1"); a("v_cndmask_b32 v10, v11, v10, vcc")
    if mask == 'exec':
        a("s_mov_b64 exec, 0x%x" % ((1<<nl)-1))
    a("s_memtime s[20:21]"); a("s_waitcnt lgkmcnt(0)")
    for i in range(12):
        a("buffer_load_dword v%d, v10, s[8:11], s40 offen %s" % (16+i, nt))
        a("s_add_u32 s40, s40, %d" % inc)
        if i == 11: a("s_waitcnt vmcnt(0)")
        a("s_memtime s[24:25]"); a("s_waitcnt lgkmcnt(0)")
        a("s_sub_u32 s%d, s24, s20" % (50+i))
    for i in range(12): a("v_mov_b32 v%d, s%d" % (232+i, 50+i))
    a("v_mov_b32 v6, s30"); a("s_mov_b64 exec, 1")
    for i in range(0, 12, 4): a("buffer_store_dwordx4 v[%d:%d], v6, s[12:15], 0 offen offset:%d" % (232+i, 235+i, 4*i))
    a("s_waitcnt vmcnt(0)")
    return HDR % 65536 + "\n".join(L) + FTR % (512, 256)
V = {}
for k in ['x','wq','lin','s8k']:
    for m in ['oob','exec','all']:
        V['%s_%s' % (k,m)] = issue(k, m)
if __name__ == "__main__":
    for k,s in V.items(): open("mb12_%s.s" % k, "w").write(s)
```
